```python
import torch

def _softmax(x, axis=-1):
    return torch.softmax(x, dim=axis)
def _gelu(x):
    return torch.nn.functional.gelu(x, approximate="tanh")
def _silu(x):
    return torch.nn.functional.silu(x)
def _sigmoid(x):
    return torch.sigmoid(x)
def _layernorm(x, axis=-1, eps=1e-5):
    m = x.mean(dim=axis, keepdim=True)
    v = x.var(dim=axis, keepdim=True, unbiased=False)
    return (x - m) / torch.sqrt(v + eps)
def _scatter_add(tgt, idx, src, axis=0):
    return tgt.clone().index_add_(axis, idx, src)
def _segment_sum(src, seg, n):
    out = torch.zeros((n,) + src.shape[1:], dtype=src.dtype)
    return out.index_add_(0, seg, src)
def _pad(x, pw):
    flat = tuple(v for pair in reversed(pw) for v in pair)
    return torch.nn.functional.pad(x, flat)

kernel_name = 'concat_heads__sliding_local_dilated__grouped_kv_mqa__prompt'

def setup_inputs():

    _w = (lambda a: (lambda t: t.to(torch.bfloat16) if t.is_floating_point() else t)(torch.as_tensor(a)))
    def _A_setup():
        B, S, D = 1, 2048, 576
        return {
            "x": _w((lambda *s: torch.randn(*s, dtype=torch.bfloat16) * 0.1)(B, S, D)),
            "wqkv": _w((lambda *s: torch.randn(*s, dtype=torch.bfloat16) * 0.8)(D, 3 * D)),
            "wo": _w((lambda *s: torch.randn(*s, dtype=torch.bfloat16) * 0.8)(D, D)),
        }
    _A_in = _A_setup()

    def _B_setup():
        B, S, D, H = 1, 2048, 576, 32
        Dh = D // H
        return {
            "x": _w((lambda *s: torch.randn(*s, dtype=torch.bfloat16) * 0.05)(B, S, D)),
            "wq": _w((lambda *s: torch.randn(*s, dtype=torch.bfloat16) * 3.2)(D, H * Dh)),
            "wk": _w((lambda *s: torch.randn(*s, dtype=torch.bfloat16) * 3.2)(D, Dh)),
            "wv": _w((lambda *s: torch.randn(*s, dtype=torch.bfloat16) * 1.6)(D, Dh)),
            "wo": _w((lambda *s: torch.randn(*s, dtype=torch.bfloat16) * 1.6)(H * Dh, D)),
        }
    _B_in = _B_setup()

    return {
        "A_x": _A_in["x"],
        "A_wqkv": _A_in["wqkv"],
        "A_wo": _A_in["wo"],
        "B_x": _B_in["x"],
        "B_wq": _B_in["wq"],
        "B_wk": _B_in["wk"],
        "B_wv": _B_in["wv"],
        "B_wo": _B_in["wo"],
    }

def reference(A_x, A_wqkv, A_wo, B_x, B_wq, B_wk, B_wv, B_wo):
    def _A_ref(x, wqkv, wo):
        B, S, D = x.shape
        H = 32; Dh = D // H
        W, dil = 8, 2
        qkv = (lambda x, *d: x.permute(*d))((x @ wqkv).reshape(B, S, 3, H, Dh), 2, 0, 3, 1, 4)
        q, k, v = qkv[0], qkv[1], qkv[2]
        scale = Dh ** -0.5
        pos = torch.arange(S)
        off = torch.arange(W) * dil
        idx = pos[:, None] - off[None, :]
        mask = idx >= 0
        idx_c = torch.where(mask, idx, 0).reshape(-1)
        kg = k[:, :, idx_c, :].reshape(B, H, S, W, Dh)
        vg = v[:, :, idx_c, :].reshape(B, H, S, W, Dh)
        logits = torch.einsum("bhsd,bhswd->bhsw", q, kg) * scale
        logits = torch.where(mask[None, None, :, :], logits, -1e9)
        attn = _softmax(logits, axis=-1)
        o = torch.einsum("bhsw,bhswd->bhsd", attn, vg)
        return (lambda x, *d: x.permute(*d))(o, 0, 2, 1, 3).reshape(B, S, D) @ wo

    def _B_ref(x, wq, wk, wv, wo):
        B, S, D = x.shape
        H = 32
        Dh = D // H
        q = (lambda x, *d: x.permute(*d))((x @ wq).reshape(B, S, H, Dh), 0, 2, 1, 3)
        k = x @ wk
        v = x @ wv
        scores = torch.einsum("bhqd,bkd->bhqk", q, k) * (Dh ** -0.5)
        p = _softmax(scores, axis=-1)
        o = torch.einsum("bhqk,bkd->bhqd", p, v)
        return (lambda x, *d: x.permute(*d))(o, 0, 2, 1, 3).reshape(B, S, H * Dh) @ wo

    a = _A_ref(A_x, A_wqkv, A_wo)
    b = _B_ref(B_x, B_wq, B_wk, B_wv, B_wo)
    return torch.concatenate([a, b], axis=-1)
```

```python
from common import *
import struct

BOFF = 24.0

def gen_attn(name="attnb_kernel", diag=False, opt=()):
    a = Asm()
    def stamp(i):
        if diag:
            a(f"s_memtime s[{30+2*i}:{31+2*i}]")
            a("s_waitcnt lgkmcnt(0)")
    Q1 = 4; Q2 = 8
    CM = 12
    SB = [28, 44]
    P = 60
    O = 68
    KB1 = [84, 88]
    KB2 = [92, 94]
    VB = [96, 104]
    AK1 = 112; AK2 = 113; AV = 114
    T0 = 115; T1 = 116; T2 = 117; T3 = 118; LANE = 119; VOFF = 120; MX = 121; T4 = 122; T5 = 123
    NV = 124
    NPRE = 3
    def dma():
        a("s_nop 0")
        a(f"buffer_load_dwordx4 v{AK1}, s[8:11], s20 offen lds")
        a("s_add_u32 m0, m0, 8192")
        a("s_add_u32 s20, s20, 8192")
    a("s_cmp_ge_u32 s2, 256")
    a("s_cbranch_scc1 L_attn_done")
    stamp(0)
    a("s_load_dwordx2 s[4:5], s[0:1], 80")
    a(f"v_and_b32 v{LANE}, 63, v0")
    a(f"v_lshrrev_b32 v{T0}, 6, v0")
    a("s_nop 0")
    a(f"v_readfirstlane_b32 s12, v{T0}")
    a(f"v_and_b32 v{T1}, 31, v{LANE}")
    a(f"v_lshrrev_b32 v{T2}, 5, v{LANE}")
    a("s_lshl_b32 s13, s2, 3")
    a("s_add_u32 s13, s13, s12")
    a(f"s_mul_i32 s16, s13, {ROWB}")
    a(f"v_mul_u32_u24 v{T3}, 36, v{T1}")
    a(f"v_lshl_add_u32 v{VOFF}, v{T2}, 4, v{T3}")
    a(f"v_lshlrev_b32 v{AK1}, 4, v{LANE}")
    a("s_lshl_b32 s19, s12, 10")
    a(f"s_add_u32 s20, s19, {WS_KV}")
    a("s_mov_b32 m0, s19")
    a(f"s_mov_b32 s10, {WS_SIZE}")
    a("s_mov_b32 s11, 0x00020000")
    a("s_waitcnt lgkmcnt(0)")
    a("s_mov_b32 s8, s4")
    a("s_mov_b32 s9, s5")
    for j in range(NPRE): dma()
    a(f"buffer_load_dwordx4 {vr(Q1,4)}, v{VOFF}, s[8:11], s16 offen")
    a(f"buffer_load_dword v{Q2}, v{T3}, s[8:11], s16 offen offset:32")
    a(f"v_lshlrev_b32 v{AK2}, 2, v{T1}")
    a(f"v_min_u32 v{T4}, 19, v{T1}")
    a(f"v_mul_u32_u24 v{T5}, 320, v{T2}")
    a(f"v_lshl_add_u32 v{AV}, v{T4}, 4, v{T5}")
    a(f"v_mov_b32 v{Q2+1}, 0")
    a(f"v_mov_b32 v{KB2[0]+1}, 0")
    a(f"v_mov_b32 v{KB2[1]+1}, 0")
    a(f"v_mov_b32 v{P+1}, 0")
    a(f"v_mov_b32 v{P+3}, 0")
    boff_bits = struct.unpack("<I", struct.pack("<f", BOFF))[0]
    a(f"s_mov_b32 s21, {hex(boff_bits)}")
    a("s_mov_b32 s17, 0")
    a("s_mov_b32 s15, 3")
    a(f"v_mov_b32 v{MX}, 0xff800000")
    a(f"v_cmp_gt_u32 vcc, 32, v{LANE}")
    a("s_waitcnt vmcnt(0)")
    a(f"v_cndmask_b32 v{Q2}, 0, v{Q2}, vcc")
    a("s_barrier")
    stamp(1)
    k1r = [KB1[0], KB1[1], VB[0], VB[0]+4]
    k2r = [KB2[0], KB2[1], P, P+2]
    for t in range(4):
        a(f"ds_read_b128 {vr(k1r[t],4)}, v{AK1} offset:{t*TS}")
        a(f"ds_read_b32 v{k2r[t]}, v{AK2} offset:{t*TS+K2OFF}")
    def qk0(t, sb):
        a(f"v_mfma_f32_32x32x16_bf16 {vr(sb,16)}, {vr(k1r[t],4)}, {vr(Q1,4)}, 0")
        a(f"v_mfma_f32_32x32x8_bf16 {vr(sb,16)}, {vr(k2r[t],2)}, {vr(Q2,2)}, {vr(sb,16)}")
    def mx(sb):
        for i in range(0, 16, 2):
            a(f"v_max3_f32 v{MX}, v{sb+i}, v{sb+i+1}, v{MX}")
    a("s_waitcnt lgkmcnt(6)")
    qk0(0, SB[0])
    a("s_waitcnt lgkmcnt(4)")
    qk0(1, SB[1])
    a("s_waitcnt lgkmcnt(2)")
    qk0(2, O)
    a("s_waitcnt lgkmcnt(0)")
    qk0(3, CM)
    a("s_nop 7")
    mx(SB[0]); mx(SB[1]); mx(O)
    a("s_nop 3")
    mx(CM)
    a.label("L_attn_setm")
    a(f"v_mov_b32 v{T0}, v{MX}")
    a("s_nop 1")
    a(f"v_permlane32_swap_b32 v{MX}, v{T0}")
    a(f"ds_read_b128 {vr(KB1[0],4)}, v{AK1}")
    a(f"ds_read_b32 v{KB2[0]}, v{AK2} offset:{K2OFF}")
    a(f"ds_read_b128 {vr(KB1[1],4)}, v{AK1} offset:{TS}")
    a(f"ds_read_b32 v{KB2[1]}, v{AK2} offset:{TS+K2OFF}")
    a(f"ds_read_b128 {vr(VB[0],4)}, v{AV} offset:{V0OFF}")
    a(f"ds_read_b128 {vr(VB[0]+4,4)}, v{AV} offset:{V1OFF}")
    a(f"v_max_f32 v{MX}, v{MX}, v{T0}")
    a(f"v_add_f32 v{MX}, s21, v{MX}")
    for i in range(16):
        a(f"v_sub_f32 v{CM+i}, 0, v{MX}")
    for i in range(16):
        a(f"v_mov_b32 v{O+i}, 0")
    for i in range(4):
        a(f"v_mov_b32 v{P+4+i}, 0")
    for i in range(4):
        a(f"v_mov_b32 v{VB[1]+4+i}, 0")
    a(f"v_mov_b32 v{T0}, v{AK1}")
    a(f"v_mov_b32 v{T1}, v{AK2}")
    a(f"v_mov_b32 v{T2}, v{AV}")
    a("s_waitcnt lgkmcnt(0)")
    a(f"v_mfma_f32_32x32x16_bf16 {vr(SB[0],16)}, {vr(KB1[0],4)}, {vr(Q1,4)}, {vr(CM,16)}")
    a(f"v_mfma_f32_32x32x8_bf16 {vr(SB[0],16)}, {vr(KB2[0],2)}, {vr(Q2,2)}, {vr(SB[0],16)}")
    a("s_mov_b32 s14, 0")
    a("s_nop 10")
    stamp(2)
    a("s_cmp_lg_u32 s17, 0")
    a("s_cbranch_scc1 L_attn_loop")
    NT = 8
    def tile(t, ndma=0):
        b = t % 2; nb = 1 - b
        Sx = SB[b]; Sn = SB[nb]
        def ex(i):
            if "noexp" not in opt: a(f"v_exp_f32 v{Sx+i}, v{Sx+i}")
        def cv(d, i):
            if "nocvt" not in opt: a(f"v_cvt_pk_bf16_f32 v{P+d}, v{Sx+i}, v{Sx+i+1}")
        L = "nolds" not in opt
        if L and "nowait" not in opt: a("s_waitcnt lgkmcnt(0)")
        if L: a(f"ds_read_b128 {vr(KB1[b],4)}, v{T0} offset:{(t+2)*TS}")
        if L: a(f"ds_read_b32 v{KB2[b]}, v{T1} offset:{(t+2)*TS+K2OFF}")
        if "nopv" not in opt: a(f"v_mfma_f32_32x32x16_bf16 {vr(O,16)}, {vr(VB[nb]+4,4)}, {vr(P+4,4)}, {vr(O,16)}")
        if L: a(f"ds_read_b128 {vr(VB[nb],4)}, v{T2} offset:{(t+1)*TS+V0OFF}")
        if L: a(f"ds_read_b128 {vr(VB[nb]+4,4)}, v{T2} offset:{(t+1)*TS+V1OFF}")
        for i in range(0, 4): ex(i)
        if "noqk" not in opt: a(f"v_mfma_f32_32x32x16_bf16 {vr(Sn,16)}, {vr(KB1[nb],4)}, {vr(Q1,4)}, {vr(CM,16)}")
        if ndma > 0: dma()
        for i in range(4, 8): ex(i)
        cv(0, 0); cv(1, 2)
        if "noqk" not in opt: a(f"v_mfma_f32_32x32x8_bf16 {vr(Sn,16)}, {vr(KB2[nb],2)}, {vr(Q2,2)}, {vr(Sn,16)}")
        cv(2, 4); cv(3, 6)
        for i in range(8, 12): ex(i)
        if "nopv" not in opt: a(f"v_mfma_f32_32x32x16_bf16 {vr(O,16)}, {vr(VB[b],4)}, {vr(P,4)}, {vr(O,16)}")
        if ndma > 1: dma()
        for i in range(12, 16): ex(i)
        cv(4, 8); cv(5, 10); cv(6, 12); cv(7, 14)
    def advance():
        a(f"v_add_u32 v{T0}, {NT*TS}, v{T0}")
        a(f"v_add_u32 v{T1}, {NT*TS}, v{T1}")
        a(f"v_add_u32 v{T2}, {NT*TS}, v{T2}")
        a("s_add_u32 s14, s14, 1")
    for t in range(NT): tile(t, 2)
    advance()
    a("s_waitcnt vmcnt(8)")
    a("s_barrier")
    a.label("L_attn_loop")
    a("s_cmp_eq_u32 s14, s15")
    a("s_cbranch_scc1 L_attn_syncb")
    a.label("L_attn_loop2")
    for t in range(NT): tile(t)
    advance()
    a(f"s_cmp_lt_u32 s14, {64//NT}")
    a("s_cbranch_scc1 L_attn_loop")
    stamp(3)
    a(f"v_mfma_f32_32x32x16_bf16 {vr(O,16)}, {vr(VB[1]+4,4)}, {vr(P+4,4)}, {vr(O,16)}")
    a("s_waitcnt lgkmcnt(0)")
    a("s_nop 15")
    a(f"v_mov_b32 v{T0}, v{O+10}")
    a(f"v_mov_b32 v{T1}, v{O+10}")
    a("s_nop 1")
    a(f"v_permlane32_swap_b32 v{T0}, v{T1}")
    a("s_nop 1")
    a(f"v_mul_f32 v{T2}, 0x4d800000, v{T0}")
    a(f"v_mul_f32 v{T2}, 0, v{T2}")
    for i in range(10):
        a(f"v_fmac_f32 v{T2}, 0, v{O+i}")
    a(f"v_cmp_u_f32 vcc, v{T2}, v{T2}")
    a("s_nop 1")
    a("s_cmp_lg_u64 vcc, 0")
    if len([o for o in opt if o.startswith("no")]) == 0: a("s_cbranch_scc1 L_attn_slow")
    a.label("L_attn_ok")
    a(f"v_rcp_f32 v{T0}, v{T0}")
    a("s_nop 0")
    for i in range(10):
        a(f"v_mul_f32 v{O+i}, v{O+i}, v{T0}")
    a(f"v_cvt_pk_bf16_f32 v{P+0}, v{O+0}, v{O+1}")
    a(f"v_cvt_pk_bf16_f32 v{P+1}, v{O+2}, v{O+3}")
    a(f"v_cvt_pk_bf16_f32 v{P+2}, v{O+4}, v{O+5}")
    a(f"v_cvt_pk_bf16_f32 v{P+3}, v{O+6}, v{O+7}")
    a(f"v_cvt_pk_bf16_f32 v{P+4}, v{O+8}, v{O+9}")
    a(f"v_and_b32 v{T1}, 31, v{LANE}")
    a(f"v_lshrrev_b32 v{T2}, 5, v{LANE}")
    a(f"v_mul_u32_u24 v{T3}, 36, v{T1}")
    a(f"v_lshl_add_u32 v{T3}, v{T2}, 3, v{T3}")
    a(f"s_add_u32 s16, s16, {WS_OB}")
    a(f"buffer_store_dwordx2 {vr(P,2)}, v{T3}, s[8:11], s16 offen")
    a(f"buffer_store_dwordx2 {vr(P+2,2)}, v{T3}, s[8:11], s16 offen offset:16")
    a(f"v_cmp_gt_u32 vcc, 32, v{LANE}")
    a("s_and_b64 exec, exec, vcc")
    a(f"buffer_store_dword v{P+4}, v{T3}, s[8:11], s16 offen offset:32")
    if diag:
        a("s_waitcnt vmcnt(0)")
        stamp(4)
        a("s_sub_u32 s32, s32, s30")
        a("s_sub_u32 s34, s34, s30")
        a("s_sub_u32 s36, s36, s30")
        a("s_sub_u32 s38, s38, s30")
        a(f"v_mov_b32 v{P}, s32")
        a(f"v_mov_b32 v{P+1}, s34")
        a(f"v_mov_b32 v{P+2}, s36")
        a(f"v_mov_b32 v{P+3}, s38")
        a("s_lshl_b32 s16, s13, 4")
        a(f"s_add_u32 s16, s16, {WS_QKVA}")
        a(f"v_mov_b32 v{T3}, 0")
        a(f"v_cmp_eq_u32 vcc, 0, v{LANE}")
        a("s_and_b64 exec, exec, vcc")
        a(f"buffer_store_dwordx4 {vr(P,4)}, v{T3}, s[8:11], s16 offen")
    a.label("L_attn_done")
    a("s_endpgm")
    a.label("L_attn_syncb")
    a("s_waitcnt vmcnt(0)")
    a("s_barrier")
    a("s_branch L_attn_loop2")
    a.label("L_attn_slow")
    a("s_cmp_lg_u32 s17, 0")
    a("s_cbranch_scc1 L_attn_ok")
    a("s_mov_b32 s17, 1")
    a("s_mov_b32 s21, 0")
    a("s_mov_b32 s15, 100")
    a(f"v_mov_b32 v{MX}, 0xff800000")
    a(f"v_mov_b32 v{T0}, v{AK1}")
    a(f"v_mov_b32 v{T1}, v{AK2}")
    a("s_mov_b32 s14, 0")
    a.label("L_attn_pre")
    a(f"ds_read_b128 {vr(KB1[0],4)}, v{T0}")
    a(f"ds_read_b32 v{KB2[0]}, v{T1} offset:{K2OFF}")
    a(f"v_add_u32 v{T0}, {TS}, v{T0}")
    a(f"v_add_u32 v{T1}, {TS}, v{T1}")
    a("s_waitcnt lgkmcnt(0)")
    a(f"v_mfma_f32_32x32x16_bf16 {vr(SB[0],16)}, {vr(KB1[0],4)}, {vr(Q1,4)}, 0")
    a(f"v_mfma_f32_32x32x8_bf16 {vr(SB[0],16)}, {vr(KB2[0],2)}, {vr(Q2,2)}, {vr(SB[0],16)}")
    a("s_add_u32 s14, s14, 1")
    a("s_nop 15")
    mx(SB[0])
    a("s_cmp_lt_u32 s14, 64")
    a("s_cbranch_scc1 L_attn_pre")
    a("s_branch L_attn_setm")
    return khead(name) + a.text(), kd(name, NV), f"; @launch kernel={name} grid=(256,1,1) block=(512,1,1) lds=163840\n"

if __name__ == "__main__":
    import sys
    for tag in sys.argv[1:]:
        opt = tuple(tag.split("+"))
        t, k, l = gen_attn(diag=True, opt=opt)
        out = l + '.amdgcn_target "amdgcn-amd-amdhsa--gfx950"\n.text\n' + t + '.section .rodata,"a"\n' + k
        open(f"attn_{tag}.s", "w").write(out)
```

```python
NAME = "concat_heads__sliding_local_dilated__grouped_kv_mqa__prompt"
S = 2048; D = 576; H = 32; DH = 18
ROWB = D * 2
WS_QB   = 0x000000
WS_KV   = 0x240000
WS_OB   = 0x280000
WS_OA   = 0x4C0000
WS_QKVA = 0x700000
WS_SIZE = 0x1000000
TS = 2432
K2OFF = 1024; V0OFF = 1152; V1OFF = 1792
KVBYTES = 64 * TS

class Asm:
    def __init__(self): self.lines = []
    def __call__(self, s=""):
        for l in s.split("\n"):
            self.lines.append("    " + l.strip() if l.strip() and not l.strip().endswith(":") else l.strip())
    def label(self, l): self.lines.append(l + ":")
    def text(self): return "\n".join(self.lines) + "\n"

def vr(b, n): return f"v[{b}:{b+n-1}]" if n > 1 else f"v{b}"
def sr(b, n): return f"s[{b}:{b+n-1}]" if n > 1 else f"s{b}"

def kd(name, vgpr, sgpr=102, accum=None):
    if accum is None: accum = (vgpr + 3) // 4 * 4
    return f"""
.p2align 6
.amdhsa_kernel {name}
  .amdhsa_next_free_vgpr {vgpr}
  .amdhsa_next_free_sgpr {sgpr}
  .amdhsa_accum_offset {accum}
  .amdhsa_group_segment_fixed_size 0
  .amdhsa_kernarg_size 88
  .amdhsa_user_sgpr_count 2
  .amdhsa_user_sgpr_kernarg_segment_ptr 1
  .amdhsa_system_sgpr_workgroup_id_x 1
.end_amdhsa_kernel
"""
def khead(name):
    return f"""
.globl {name}
.p2align 8
.type {name},@function
{name}:
"""
```

```python
from common import *
import struct
CSCALE = DH**-0.5 * 1.4426950408889634
def f32bits(x): return struct.unpack("<I", struct.pack("<f", x))[0]

def gemm_body(a, NCT, tag, scaled_possible):
    RS = NCT * 64
    STEP = 16 * RS
    CH = 4 * STEP
    NSLOT = min(9, 163840 // CH)
    XR = 0 + 16
    WF = [160, 160 + 4*NCT]
    base = 160 + 8 * NCT
    VW = base
    VX = base + NCT
    VA = [VX + 1, VX + 2, VX + 3]
    T = VX + 4
    LANE = T + 8
    NV = LANE + 1
    slots_per_base = 65536 // CH
    while (slots_per_base - 1) * CH + 3 * STEP + (NCT - 1) * 64 + 4 * RS > 65535: slots_per_base -= 1
    a(f"v_and_b32 v{LANE}, 63, v0")
    magic = (1 << 32) // RS + 1
    a(f"s_mov_b32 s28, {magic}")
    for i in range(NCT):
        a(f"v_lshlrev_b32 v{T}, 4, v{LANE}")
        if i: a(f"v_add_u32 v{T}, {1024*i}, v{T}")
        a(f"v_mul_hi_u32 v{T+1}, v{T}, s28")
        a(f"v_mul_u32_u24 v{T+2}, {RS}, v{T+1}")
        a(f"v_sub_u32 v{T+2}, v{T}, v{T+2}")
        a(f"v_mul_lo_u32 v{T+1}, v{T+1}, s22")
        a(f"v_add_u32 v{VW+i}, v{T+1}, v{T+2}")
    a(f"v_and_b32 v{T}, 31, v{LANE}")
    a(f"v_lshrrev_b32 v{T+1}, 5, v{LANE}")
    a(f"s_lshl_b32 s29, s27, 5")
    a(f"v_add_u32 v{T+2}, s29, v{T}")
    a(f"v_mul_u32_u24 v{T+2}, {ROWB}, v{T+2}")
    a(f"v_lshl_add_u32 v{VX}, v{T+1}, 4, v{T+2}")
    a("s_lshl_b32 s31, s22, 4")
    a("s_mul_i32 s30, s31, s27")
    a("s_add_u32 s30, s30, s21")
    a("s_lshl_b32 s31, s22, 6")
    a(f"s_mul_i32 s32, s27, {STEP}")
    def issue(c):
        slot = c % NSLOT
        for i in range(NCT):
            a(f"s_add_u32 m0, s32, {slot*CH + 1024*i}")
            a("s_nop 0")
            a(f"buffer_load_dwordx4 v{VW+i}, s[12:15], s30 offen lds")
        a("s_add_u32 s30, s30, s31")
        for j in range(4):
            s = 4*c + j
            a(f"buffer_load_dwordx4 {vr(XR+4*s,4)}, v{VX}, s[8:11], s20 offen offset:{32*s}")
    G = NCT + 4
    nup = min(9, NSLOT)
    for c in range(nup): issue(c)
    a(f"v_lshrrev_b32 v{T}, 5, v{LANE}")
    a(f"v_lshlrev_b32 v{T}, 3, v{T}")
    a(f"v_bfe_u32 v{T+1}, v{LANE}, 2, 2")
    a(f"v_add_u32 v{T}, v{T}, v{T+1}")
    a(f"v_mul_u32_u24 v{T}, {RS}, v{T}")
    a(f"v_bfe_u32 v{T+1}, v{LANE}, 4, 1")
    a(f"v_lshlrev_b32 v{T+1}, 5, v{T+1}")
    a(f"v_and_b32 v{T+2}, 3, v{LANE}")
    a(f"v_lshlrev_b32 v{T+2}, 3, v{T+2}")
    a(f"v_add3_u32 v{VA[0]}, v{T}, v{T+1}, v{T+2}")
    a(f"v_add_u32 v{VA[1]}, {slots_per_base*CH}, v{VA[0]}")
    a(f"v_add_u32 v{VA[2]}, {2*slots_per_base*CH}, v{VA[0]}")
    for i in range(16 * NCT):
        a(f"v_accvgpr_write_b32 a{i}, 0")
    def wread(s, buf):
        c = s // 4; j = s % 4; slot = c % NSLOT
        bi = slot // slots_per_base
        off = (slot - bi * slots_per_base) * CH + j * STEP
        for ct in range(NCT):
            a(f"ds_read_b64_tr_b16 {vr(WF[buf]+4*ct,2)}, v{VA[bi]} offset:{off + ct*64}")
            a(f"ds_read_b64_tr_b16 {vr(WF[buf]+4*ct+2,2)}, v{VA[bi]} offset:{off + ct*64 + 4*RS}")
    issued = list(range(nup))
    for c in range(9):
        after = sum(G for cc in issued if cc > c)
        a(f"s_waitcnt vmcnt({min(after, 63)})")
        a("s_barrier")
        if c >= 1 and (c - 1 + NSLOT) < 9:
            issue(c - 1 + NSLOT); issued.append(c - 1 + NSLOT)
        for j in range(4):
            s = 4*c + j
            if j == 0: wread(s, 0)
            if j < 3:
                wread(s + 1, (j + 1) % 2)
                a(f"s_waitcnt lgkmcnt({2*NCT})")
            else:
                a("s_waitcnt lgkmcnt(0)")
            for ct in range(NCT):
                a(f"v_mfma_f32_32x32x16_bf16 a[{16*ct}:{16*ct+15}], {vr(WF[j%2]+4*ct,4)}, {vr(XR+4*s,4)}, a[{16*ct}:{16*ct+15}]")
    a(f"v_and_b32 v{T}, 31, v{LANE}")
    a(f"v_lshrrev_b32 v{T+1}, 5, v{LANE}")
    a(f"v_add_u32 v{T}, s29, v{T}")
    a(f"v_mul_lo_u32 v{T}, v{T}, s24")
    a(f"v_lshl_add_u32 v{VX}, v{T+1}, 4, v{T}")
    a(f"s_mov_b32 s28, {hex(f32bits(CSCALE))}")
    a("s_nop 8")
    E = 16
    for ct in range(NCT):
        if ct > 0:
            a(f"s_cmp_le_u32 s25, {ct}")
            a(f"s_cbranch_scc1 L_{tag}_end")
        R = E + 24 * (ct % 2)
        for r in range(16):
            a(f"v_accvgpr_read_b32 v{R+r}, a{16*ct+r}")
        PK = R + 16
        for p in range(8):
            a(f"v_cvt_pk_bf16_f32 v{PK+p}, v{R+2*p}, v{R+2*p+1}")
        if scaled_possible:
            a("s_cmp_eq_u32 s26, 0")
            a(f"s_cbranch_scc1 L_{tag}_ns{ct}")
            for p in range(8):
                a(f"v_lshlrev_b32 v{R+2*p}, 16, v{PK+p}")
                a(f"v_and_b32 v{R+2*p+1}, 0xffff0000, v{PK+p}")
                a(f"v_mul_f32 v{R+2*p}, s28, v{R+2*p}")
                a(f"v_mul_f32 v{R+2*p+1}, s28, v{R+2*p+1}")
                a(f"v_cvt_pk_bf16_f32 v{PK+p}, v{R+2*p}, v{R+2*p+1}")
            a.label(f"L_{tag}_ns{ct}")
        a("s_nop 1")
        for q in (0, 2):
            a(f"v_permlane32_swap_b32 v{PK+2*q}, v{PK+2*q+2}")
            a(f"v_permlane32_swap_b32 v{PK+2*q+1}, v{PK+2*q+3}")
        for q in (0, 2):
            a(f"buffer_store_dwordx4 {vr(PK+2*q,4)}, v{VX}, s[16:19], s23 offen offset:{ct*64 + 16*q}")
    a.label(f"L_{tag}_end")
    return NV, 16 * NCT

def kv_body(a, tag):
    RS = 192
    XR = 16
    T = 170; LANE = 180; VA = 181; VX = 182; WFK = 184; WFV = 188
    a(f"v_and_b32 v{LANE}, 63, v0")
    a(f"v_and_b32 v{T}, 31, v{LANE}")
    a(f"v_lshrrev_b32 v{T+1}, 5, v{LANE}")
    a(f"s_lshl_b32 s29, s27, 5")
    a(f"v_add_u32 v{T+2}, s29, v{T}")
    a(f"v_mul_u32_u24 v{T+2}, {ROWB}, v{T+2}")
    a(f"v_lshl_add_u32 v{VX}, v{T+1}, 4, v{T+2}")
    a(f"v_lshlrev_b32 v{T+3}, 2, v0")
    NI = 21
    WK = 192; WV = 192 + NI
    for i in range(NI):
        a(f"s_mov_b32 s28, {1024*i}")
        a(f"buffer_load_dword v{WK+i}, v{T+3}, s[12:15], s28 offen")
        a(f"buffer_load_dword v{WV+i}, v{T+3}, s[36:39], s28 offen")
    for s in range(36):
        a(f"buffer_load_dwordx4 {vr(XR+4*s,4)}, v{VX}, s[8:11], s20 offen offset:{32*s}")
    magic9 = (1 << 32) // 9 + 1
    a(f"s_mov_b32 s28, {magic9}")
    a("s_waitcnt vmcnt(36)")
    for i in range(NI):
        a(f"v_add_u32 v{T}, {256*i}, v0")
        a(f"v_mul_hi_u32 v{T+1}, v{T}, s28")
        a(f"v_mul_u32_u24 v{T+2}, 9, v{T+1}")
        a(f"v_sub_u32 v{T+2}, v{T}, v{T+2}")
        a(f"v_mul_u32_u24 v{T+1}, {RS}, v{T+1}")
        a(f"v_lshl_add_u32 v{T+1}, v{T+2}, 2, v{T+1}")
        a(f"ds_write_b32 v{T+1}, v{WK+i}")
        a(f"ds_write_b32 v{T+1}, v{WV+i} offset:64")
    a(f"v_lshrrev_b32 v{T}, 5, v{LANE}")
    a(f"v_lshlrev_b32 v{T}, 3, v{T}")
    a(f"v_bfe_u32 v{T+1}, v{LANE}, 2, 2")
    a(f"v_add_u32 v{T}, v{T}, v{T+1}")
    a(f"v_mul_u32_u24 v{T}, {RS}, v{T}")
    a(f"v_bfe_u32 v{T+1}, v{LANE}, 4, 1")
    a(f"v_lshlrev_b32 v{T+1}, 5, v{T+1}")
    a(f"v_and_b32 v{T+2}, 3, v{LANE}")
    a(f"v_lshlrev_b32 v{T+2}, 3, v{T+2}")
    a(f"v_add3_u32 v{VA}, v{T}, v{T+1}, v{T+2}")
    a(f"v_add_u32 v{VA+2}, {18*16*RS}, v{VA}")
    for i in range(32):
        a(f"v_accvgpr_write_b32 a{i}, 0")
    a("s_waitcnt lgkmcnt(0)")
    a("s_barrier")
    for s in range(36):
        b = VA if s < 18 else VA + 2
        off = (s % 18) * 16 * RS
        a(f"ds_read_b64_tr_b16 {vr(WFK,2)}, v{b} offset:{off}")
        a(f"ds_read_b64_tr_b16 {vr(WFK+2,2)}, v{b} offset:{off + 4*RS}")
        a(f"ds_read_b64_tr_b16 {vr(WFV,2)}, v{b} offset:{off + 64}")
        a(f"ds_read_b64_tr_b16 {vr(WFV+2,2)}, v{b} offset:{off + 64 + 4*RS}")
        a(f"s_waitcnt vmcnt({35-s}) lgkmcnt(0)")
        a(f"v_mfma_f32_32x32x16_bf16 a[0:15], {vr(WFK,4)}, {vr(XR+4*s,4)}, a[0:15]")
        a(f"v_mfma_f32_32x32x16_bf16 a[16:31], {vr(XR+4*s,4)}, {vr(WFV,4)}, a[16:31]")
    a("s_lshl_b32 s28, s33, 2")
    a("s_add_u32 s28, s28, s27")
    a(f"s_mul_i32 s28, s28, {TS}")
    a(f"s_add_u32 s28, s28, {WS_KV}")
    a(f"v_and_b32 v{T}, 31, v{LANE}")
    a(f"v_lshrrev_b32 v{T+1}, 5, v{LANE}")
    a(f"v_lshlrev_b32 v{T+2}, 4, v{T}")
    a(f"v_lshl_add_u32 v{T+2}, v{T+1}, 3, v{T+2}")
    a(f"v_lshlrev_b32 v{T+3}, 2, v{T}")
    a(f"v_mul_u32_u24 v{T+4}, 320, v{T+1}")
    a(f"v_lshl_add_u32 v{T+4}, v{T}, 4, v{T+4}")
    a("s_nop 8")
    R = 16
    for r in range(32):
        a(f"v_accvgpr_read_b32 v{R+r}, a{r}")
    PK = 48
    for p in range(16):
        a(f"v_cvt_pk_bf16_f32 v{PK+p}, v{R+2*p}, v{R+2*p+1}")
    a(f"buffer_store_dwordx2 {vr(PK,2)}, v{T+2}, s[16:19], s28 offen")
    a(f"buffer_store_dwordx2 {vr(PK+2,2)}, v{T+2}, s[16:19], s28 offen offset:512")
    a(f"v_mov_b32 v{T+5}, 0x3f803f80")
    a(f"v_cmp_eq_u32 vcc, 18, v{T}")
    a("s_nop 1")
    for p in range(8): a(f"v_cndmask_b32 v{PK+8+p}, v{PK+8+p}, v{T+5}, vcc")
    a(f"v_cmp_eq_u32 vcc, 19, v{T}")
    a("s_nop 1")
    for p in range(8): a(f"v_cndmask_b32 v{PK+8+p}, v{PK+8+p}, 0, vcc")
    a(f"v_cmp_gt_u32 vcc, 20, v{T}")
    a("s_and_saveexec_b64 s[34:35], vcc")
    a(f"buffer_store_dwordx4 {vr(PK+8,4)}, v{T+4}, s[16:19], s28 offen offset:{V0OFF}")
    a(f"buffer_store_dwordx4 {vr(PK+12,4)}, v{T+4}, s[16:19], s28 offen offset:{V1OFF}")
    a("s_mov_b64 exec, s[34:35]")
    a(f"v_cmp_gt_u32 vcc, 32, v{LANE}")
    a("s_and_b64 exec, exec, vcc")
    a(f"buffer_store_dword v{PK+4}, v{T+3}, s[16:19], s28 offen offset:{K2OFF}")
    return 192 + 2 * NI

def srd(a, d, lo, nbytes):
    a(f"s_mov_b32 s{d}, s{lo}")
    a(f"s_mov_b32 s{d+1}, s{lo+1}")
    a(f"s_mov_b32 s{d+2}, {nbytes}")
    a(f"s_mov_b32 s{d+3}, 0x00020000")

def gen_proj(name="proj_kernel"):
    a = Asm()
    a("s_cmp_ge_u32 s2, 256")
    a("s_cbranch_scc1 L_proj_end")
    a("s_load_dwordx16 s[40:55], s[0:1], 0")
    a("s_load_dwordx2 s[56:57], s[0:1], 80")
    a("v_lshrrev_b32 v1, 6, v0")
    a("s_nop 0")
    a("v_readfirstlane_b32 s27, v1")
    a("s_and_b32 s3, s2, 7")
    a("s_lshr_b32 s4, s2, 3")
    a("s_and_b32 s5, s4, 7")
    a("s_lshr_b32 s6, s4, 3")
    a("s_waitcnt lgkmcnt(0)")
    srd(a, 16, 56, WS_SIZE)
    a("s_cmp_ge_u32 s3, 6")
    a("s_cbranch_scc1 L_proj_B")
    a("s_cmp_ge_u32 s3, 3")
    a("s_cselect_b32 s7, 1, 0")
    a("s_mul_i32 s33, s7, 3")
    a("s_sub_u32 s34, s3, s33")
    a("s_lshl_b32 s33, s7, 3")
    a("s_add_u32 s33, s33, s5")
    a("s_lshl_b32 s34, s34, 2")
    a("s_add_u32 s34, s34, s6")
    a(f"s_mul_i32 s20, s33, {128*ROWB}")
    a("s_cmp_eq_u32 s34, 11")
    a("s_cbranch_scc1 L_proj_KV")
    srd(a, 8, 40, S*ROWB)
    srd(a, 12, 42, D*3456)
    a("s_mul_i32 s21, s34, 320")
    a("s_mov_b32 s22, 3456")
    a(f"s_mul_i32 s23, s33, {128*3456}")
    a("s_add_u32 s23, s23, s21")
    a(f"s_add_u32 s23, s23, {WS_QKVA}")
    a("s_mov_b32 s24, 3456")
    a("s_cmp_eq_u32 s34, 10")
    a("s_cselect_b32 s25, 4, 5")
    a("s_mov_b32 s26, 0")
    a("s_branch L_proj_go")
    a.label("L_proj_B")
    a("s_sub_u32 s7, s3, 6")
    a("s_lshl_b32 s33, s7, 3")
    a("s_add_u32 s33, s33, s5")
    a(f"s_mul_i32 s20, s33, {128*ROWB}")
    srd(a, 8, 46, S*ROWB)
    srd(a, 12, 48, D*ROWB)
    a("s_mul_i32 s21, s6, 320")
    a(f"s_mov_b32 s22, {ROWB}")
    a("s_add_u32 s23, s20, s21")
    a(f"s_add_u32 s23, s23, {WS_QB}")
    a(f"s_mov_b32 s24, {ROWB}")
    a("s_cmp_eq_u32 s6, 3")
    a("s_cselect_b32 s25, 3, 5")
    a("s_mov_b32 s26, 1")
    a.label("L_proj_go")
    nv, na = gemm_body(a, 5, "proj", True)
    a("s_endpgm")
    a.label("L_proj_KV")
    srd(a, 8, 46, S*ROWB)
    srd(a, 12, 50, D*36)
    srd(a, 36, 52, D*36)
    nv2 = kv_body(a, "kv")
    a("s_endpgm")
    nv = max(nv, nv2)
    acc = (nv + 3) // 4 * 4
    return khead(name) + a.text(), kd(name, acc + na, accum=acc), f"; @launch kernel={name} grid=(256,1,1) block=(256,1,1) lds=163840\n"

def gen_outproj(name="outp_kernel"):
    a = Asm()
    a("s_cmp_ge_u32 s2, 192")
    a("s_cbranch_scc1 L_outp_end")
    a("s_load_dwordx2 s[44:45], s[0:1], 16")
    a("s_load_dwordx2 s[54:55], s[0:1], 56")
    a("s_load_dwordx2 s[58:59], s[0:1], 64")
    a("s_load_dwordx2 s[56:57], s[0:1], 80")
    a("v_lshrrev_b32 v1, 6, v0")
    a("s_nop 0")
    a("v_readfirstlane_b32 s27, v1")
    a("s_and_b32 s3, s2, 7")
    a("s_lshr_b32 s4, s2, 3")
    a("s_and_b32 s5, s4, 3")
    a("s_lshr_b32 s6, s4, 2")
    a("s_and_b32 s7, s3, 3")
    a("s_lshl_b32 s33, s7, 2")
    a("s_add_u32 s33, s33, s5")
    a("s_lshr_b32 s34, s3, 2")
    a("s_waitcnt lgkmcnt(0)")
    srd(a, 8, 56, WS_SIZE)
    srd(a, 16, 58, S*2*ROWB)
    a("s_cmp_eq_u32 s34, 0")
    a("s_cselect_b32 s12, s44, s54")
    a("s_cselect_b32 s13, s45, s55")
    a(f"s_mov_b32 s14, {D*ROWB}")
    a("s_mov_b32 s15, 0x00020000")
    a(f"s_mov_b32 s35, {WS_OB}")
    a(f"s_cselect_b32 s35, {WS_OA}, s35")
    a(f"s_mul_i32 s20, s33, {128*ROWB}")
    a("s_add_u32 s20, s20, s35")
    a("s_mul_i32 s21, s6, 192")
    a(f"s_mov_b32 s22, {ROWB}")
    a(f"s_mul_i32 s23, s33, {128*2*ROWB}")
    a("s_add_u32 s23, s23, s21")
    a(f"s_mul_i32 s35, s34, {ROWB}")
    a("s_add_u32 s23, s23, s35")
    a(f"s_mov_b32 s24, {2*ROWB}")
    a("s_mov_b32 s25, 3")
    a("s_mov_b32 s26, 0")
    nv, na = gemm_body(a, 3, "outp", False)
    a("s_endpgm")
    acc = (nv + 3) // 4 * 4
    return khead(name) + a.text(), kd(name, acc + na, accum=acc), f"; @launch kernel={name} grid=(192,1,1) block=(256,1,1) lds={9*4*16*192}\n"
```

```python
from common import *
from gemm import f32bits, CSCALE, srd

def gen_local(name="locala_kernel"):
    a = Asm()
    Q = 4
    KR = [16 + 10*w for w in range(8)]
    VR = [96 + 10*w for w in range(8)]
    AW = 176
    T = 184; O = 196
    NV = 214
    a("s_cmp_ge_u32 s2, 256")
    a("s_cbranch_scc1 L_loc_end")
    a("s_load_dwordx2 s[4:5], s[0:1], 80")
    a(f"v_and_b32 v{T}, 31, v0")
    a(f"v_lshrrev_b32 v{T+1}, 5, v0")
    a("s_lshl_b32 s3, s2, 3")
    a(f"v_add_u32 v{T+1}, s3, v{T+1}")
    a(f"v_mul_u32_u24 v{T+2}, 36, v{T}")
    a(f"s_mov_b32 s6, {WS_QKVA}")
    for w in range(8):
        a(f"v_subrev_u32 v{T+3}, {2*w}, v{T+1}")
        a(f"v_max_i32 v{T+3}, 0, v{T+3}")
        a(f"v_mul_u32_u24 v{T+3}, 3456, v{T+3}")
        a(f"v_add_u32 v{AW+w}, v{T+3}, v{T+2}")
    a("s_waitcnt lgkmcnt(0)")
    srd(a, 8, 4, WS_SIZE)
    def ld9(dst, voff, imm):
        a(f"buffer_load_dwordx4 {vr(dst,4)}, v{voff}, s[8:11], s6 offen offset:{imm}")
        a(f"buffer_load_dwordx4 {vr(dst+4,4)}, v{voff}, s[8:11], s6 offen offset:{imm+16}")
        a(f"buffer_load_dword v{dst+8}, v{voff}, s[8:11], s6 offen offset:{imm+32}")
    ld9(Q, AW, 0)
    for w in range(8): ld9(KR[w], AW + w, 1152)
    for w in range(8): ld9(VR[w], AW + w, 2304)
    a(f"s_mov_b32 s7, {hex(f32bits(CSCALE))}")
    a(f"v_mov_b32 v{T+4}, 0xff800000")
    for w in range(8):
        a(f"s_waitcnt vmcnt({24 + 3*(7-w)})")
        a(f"v_dot2_f32_bf16 v{AW+w}, v{Q}, v{KR[w]}, 0")
        for i in range(1, 9):
            a(f"v_dot2_f32_bf16 v{AW+w}, v{Q+i}, v{KR[w]+i}, v{AW+w}")
        a("s_nop 2")
        a(f"v_mul_f32 v{AW+w}, s7, v{AW+w}")
        if w:
            a(f"v_cmp_le_u32 vcc, {2*w}, v{T+1}")
            a("s_nop 1")
            a(f"v_cndmask_b32 v{AW+w}, v{T+4}, v{AW+w}, vcc")
    a(f"v_max3_f32 v{T+5}, v{AW}, v{AW+1}, v{AW+2}")
    a(f"v_max3_f32 v{T+5}, v{T+5}, v{AW+3}, v{AW+4}")
    a(f"v_max3_f32 v{T+5}, v{T+5}, v{AW+5}, v{AW+6}")
    a(f"v_max_f32 v{T+5}, v{T+5}, v{AW+7}")
    for w in range(8):
        a(f"v_sub_f32 v{AW+w}, v{AW+w}, v{T+5}")
        a(f"v_exp_f32 v{AW+w}, v{AW+w}")
    a("s_nop 0")
    a(f"v_add_f32 v{T+6}, v{AW}, v{AW+1}")
    for w in range(2, 8): a(f"v_add_f32 v{T+6}, v{T+6}, v{AW+w}")
    a(f"v_rcp_f32 v{T+6}, v{T+6}")
    a("s_nop 0")
    for w in range(8): a(f"v_mul_f32 v{AW+w}, v{AW+w}, v{T+6}")
    for w in range(8):
        a(f"s_waitcnt vmcnt({3*(7-w)})")
        for i in range(9):
            a(f"v_lshlrev_b32 v{T+7}, 16, v{VR[w]+i}")
            a(f"v_and_b32 v{T+8}, 0xffff0000, v{VR[w]+i}")
            if w == 0:
                a(f"v_mul_f32 v{O+2*i}, v{AW}, v{T+7}")
                a(f"v_mul_f32 v{O+2*i+1}, v{AW}, v{T+8}")
            else:
                a(f"v_fmac_f32 v{O+2*i}, v{AW+w}, v{T+7}")
                a(f"v_fmac_f32 v{O+2*i+1}, v{AW+w}, v{T+8}")
    for i in range(9):
        a(f"v_cvt_pk_bf16_f32 v{16+i}, v{O+2*i}, v{O+2*i+1}")
    a(f"v_mul_u32_u24 v{T+3}, {ROWB}, v{T+1}")
    a(f"v_add_u32 v{T+3}, v{T+3}, v{T+2}")
    a(f"s_mov_b32 s6, {WS_OA}")
    a(f"buffer_store_dwordx4 v[16:19], v{T+3}, s[8:11], s6 offen")
    a(f"buffer_store_dwordx4 v[20:23], v{T+3}, s[8:11], s6 offen offset:16")
    a(f"buffer_store_dword v24, v{T+3}, s[8:11], s6 offen offset:32")
    a.label("L_loc_end")
    a("s_endpgm")
    return khead(name) + a.text(), kd(name, NV), f"; @launch kernel={name} grid=(256,1,1) block=(256,1,1) lds=0\n"
```

```python
import sys
from common import *
from attn import gen_attn
from gemm import gen_proj, gen_outproj
from local import gen_local
HEADER = open("cdna_kernels/" + NAME + ".s.ref").read().split("; Override launch geometry")[0]
def build(parts, path):
    L = ""; T = ""; K = ""
    for t, k, l in parts:
        L += l; T += t; K += k
    out = HEADER + L + '.amdgcn_target "amdgcn-amd-amdhsa--gfx950"\n.text\n' + T + '.section .rodata,"a"\n' + K
    open(path, "w").write(out)
if __name__ == "__main__":
    build([gen_proj(), gen_local(), gen_attn(), gen_outproj()], "cdna_kernels/" + NAME + ".s")
```
